```python
import torch

def _softmax(x, axis=-1):
    return torch.softmax(x, dim=axis)
def _gelu(x):
    return torch.nn.functional.gelu(x, approximate="tanh")
def _silu(x):
    return torch.nn.functional.silu(x)
def _sigmoid(x):
    return torch.sigmoid(x)
def _layernorm(x, axis=-1, eps=1e-5):
    m = x.mean(dim=axis, keepdim=True)
    v = x.var(dim=axis, keepdim=True, unbiased=False)
    return (x - m) / torch.sqrt(v + eps)
def _scatter_add(tgt, idx, src, axis=0):
    return tgt.clone().index_add_(axis, idx, src)
def _segment_sum(src, seg, n):
    out = torch.zeros((n,) + src.shape[1:], dtype=src.dtype)
    return out.index_add_(0, seg, src)
def _pad(x, pw):
    flat = tuple(v for pair in reversed(pw) for v in pair)
    return torch.nn.functional.pad(x, flat)

kernel_name = 'parallel_sum__sliding_block_cached__glu_gated_reglu__decode'

def setup_inputs():

    _w = (lambda a: (lambda t: t.to(torch.bfloat16) if t.is_floating_point() else t)(torch.as_tensor(a)))
    def _A_setup():
        B, Sq, D = 2, 1, 512
        Hq, Hkv, Sk, Dh = 32, 8, 32768, 128
        assert Hq % Hkv == 0, (Hq, Hkv)
        return {
            "x": _w((lambda *s: torch.randn(*s, dtype=torch.bfloat16) * 0.05)(B, Sq, D)),
            "k_cache": _w((lambda *s: torch.randn(*s, dtype=torch.bfloat16) * 1.6)(B, Hkv, Sk, Dh)),
            "v_cache": _w((lambda *s: torch.randn(*s, dtype=torch.bfloat16) * 0.8)(B, Hkv, Sk, Dh)),
            "wq": _w((lambda *s: torch.randn(*s, dtype=torch.bfloat16) * 1.6)(D, Hq * Dh) * (D ** -0.5)),
            "wo": _w((lambda *s: torch.randn(*s, dtype=torch.bfloat16) * 0.8)(Hq * Dh, D) * ((Hq * Dh) ** -0.5)),
        }
    _A_in = _A_setup()

    def _B_setup():
        B, S, D, F = 2, 1, 512, 1792
        return {
            "x": _w((lambda *s: torch.randn(*s, dtype=torch.bfloat16) * 0.05)(B, S, D)),
            "W_gate": _w((lambda *s: torch.randn(*s, dtype=torch.bfloat16) * 0.4)(D, F) * (2.0 / D) ** 0.5),
            "W_up": _w((lambda *s: torch.randn(*s, dtype=torch.bfloat16) * 0.4)(D, F) * (2.0 / D) ** 0.5),
            "W_down": _w((lambda *s: torch.randn(*s, dtype=torch.bfloat16) * 0.4)(F, D) * (1.0 / F) ** 0.5),
        }
    _B_in = _B_setup()

    return {
        "A_x": _A_in["x"],
        "A_k_cache": _A_in["k_cache"],
        "A_v_cache": _A_in["v_cache"],
        "A_wq": _A_in["wq"],
        "A_wo": _A_in["wo"],
        "B_x": _B_in["x"],
        "B_W_gate": _B_in["W_gate"],
        "B_W_up": _B_in["W_up"],
        "B_W_down": _B_in["W_down"],
    }

def reference(A_x, A_k_cache, A_v_cache, A_wq, A_wo, B_x, B_W_gate, B_W_up, B_W_down):
    def _A_ref(x, k_cache, v_cache, wq, wo):
        B, Sq, D = x.shape
        Hq, Dh = 32, 128
        Hkv, Sk = k_cache.shape[1], k_cache.shape[2]
        W = min(4096, max(256, Sk // 4))
        rep = Hq // Hkv
        q = (lambda x, *d: x.permute(*d))((x @ wq).reshape(B, Sq, Hq, Dh), 0, 2, 1, 3)
        k = (lambda x, n, axis: torch.repeat_interleave(x, n, dim=axis))(k_cache[:, :, Sk - W:, :], rep, axis=1)
        v = (lambda x, n, axis: torch.repeat_interleave(x, n, dim=axis))(v_cache[:, :, Sk - W:, :], rep, axis=1)
        scores = torch.einsum("bhqd,bhkd->bhqk", q, k) * (Dh ** -0.5)
        p = _softmax(scores, axis=-1)
        o = torch.einsum("bhqk,bhkd->bhqd", p, v)
        return (lambda x, *d: x.permute(*d))(o, 0, 2, 1, 3).reshape(B, Sq, Hq * Dh) @ wo

    def _B_ref(x, W_gate, W_up, W_down):
        gate = torch.einsum("bsd,df->bsf", x, W_gate)
        up = torch.einsum("bsd,df->bsf", x, W_up)
        gate = gate * (lambda x, dt: x.to(dt))(gate > 0, gate.dtype)
        h = gate * up
        return torch.einsum("bsf,fd->bsd", h, W_down)

    x = A_x
    xn = _layernorm(x, axis=-1)
    return x + _A_ref(xn, A_k_cache, A_v_cache, A_wq, A_wo) + _B_ref(xn, B_W_gate, B_W_up, B_W_down)
```

```python
KN = "parallel_sum__sliding_block_cached__glu_gated_reglu__decode_kernel"
def wrap(body, grid=256, block=512, lds=0, vgpr=128, sgpr=96, accum=None, header=""):
    accum = accum or ((vgpr + 3) // 4 * 4)
    return f"""{header}; @launch grid=({grid},1,1) block=({block},1,1) lds={lds}
.amdgcn_target "amdgcn-amd-amdhsa--gfx950"
.text
.globl {KN}
.p2align 8
.type {KN},@function
{KN}:
{body}
.section .rodata,"a"
.p2align 6
.amdhsa_kernel {KN}
  .amdhsa_next_free_vgpr {vgpr}
  .amdhsa_next_free_sgpr {sgpr}
  .amdhsa_accum_offset {accum}
  .amdhsa_group_segment_fixed_size 0
  .amdhsa_kernarg_size 96
  .amdhsa_user_sgpr_count 2
  .amdhsa_user_sgpr_kernarg_segment_ptr 1
  .amdhsa_system_sgpr_workgroup_id_x 1
.end_amdhsa_kernel
"""
```

```python
import sys
from asmlib import KN

HEADER = open("parallel_sum__sliding_block_cached__glu_gated_reglu__decode.s.ref").read().split("; @launch")[0]

WS_EPOCH = 0
WS_QP = 0x1000
WS_GP = 0x50000
WS_ST = 0x90000
WS_OP = 0xA0000
WS_FP = 0x120000
STAMP_OFF = 0x10000000
L_K = 16384
L_XN = 0
L_Q = L_XN + 4096
L_MX = L_Q + 1536
L_LS = L_MX + 256
L_H = L_LS + 256
L_OW = L_H + 256
LDS_TOTAL = 98304
SPIN = 200000

class G:
    def __init__(s, stamps=False):
        s.L = []; s.stamps = stamps; s.nlabel = 0
    def __call__(s, t):
        for line in t.strip().split("\n"):
            s.L.append("    " + line.strip() if not line.strip().endswith(":") else line.strip())
    def stamp(s, i):
        if s.stamps: s(f"s_memrealtime s[{60+2*i}:{61+2*i}]")
    def lab(s, p="L"):
        s.nlabel += 1; return f"{p}{s.nlabel}"

def vr(a, n=4): return f"v[{a}:{a+n-1}]"

def tagcheck(A, regs, acc, retry, giveup_s="s40"):
    for r in regs: A(f"v_xor_b32 v{r}, s36, v{r}")
    rs = list(regs)
    A(f"v_or3_b32 v{acc}, v{rs[0]}, v{rs[1]}, v{rs[2]}")
    k = 3
    while k + 1 < len(rs):
        A(f"v_or3_b32 v{acc}, v{acc}, v{rs[k]}, v{rs[k+1]}"); k += 2
    if k < len(rs): A(f"v_or_b32 v{acc}, v{acc}, v{rs[k]}")
    A(f"v_and_b32 v{acc}, 0xff, v{acc}")
    A(f"v_cmp_ne_u32 vcc, 0, v{acc}")
    done = A.lab("OK")
    A(f"s_cbranch_vccz {done}")
    A(f"s_sub_u32 {giveup_s}, {giveup_s}, 1")
    A(f"s_cbranch_scc0 {retry}")
    A(f"s_mov_b32 {giveup_s}, 0")
    A(f"{done}:")

def tag4(A, dst, src):
    for r in range(4): A(f"v_and_or_b32 v{dst+r}, v{src+r}, s37, v5")

def stamp_store(A, first, n):
    A("s_waitcnt lgkmcnt(0)")
    A("s_lshl_b32 s3, s2, 7")
    A("s_add_u32 s56, s30, s3"); A("s_addc_u32 s57, s31, 0")
    A(f"s_add_u32 s56, s56, {STAMP_OFF}"); A("s_addc_u32 s57, s57, 0")
    A("v_mov_b32 v0, 0"); A("s_mov_b64 exec, 1")
    for i in range(first, first + n):
        A(f"v_mov_b32 v2, s{60+2*i}"); A(f"v_mov_b32 v3, s{61+2*i}")
        A(f"global_store_dwordx2 v0, v[2:3], s[56:57] offset:{8*i}"); A("s_nop 1")

def gen(D=6, stamps=False, prefetch=True):
    A = G(stamps)
    A.stamp(0)
    A(f"""
    s_load_dwordx16 s[8:23], s[0:1], 0
    s_load_dwordx8 s[24:31], s[0:1], 64
    s_cmp_ge_u32 s2, 256
    s_cbranch_scc1 END
    v_lshrrev_b32 v1, 6, v0
    v_and_b32 v2, 63, v0
    v_readfirstlane_b32 s3, v1
    v_and_b32 v3, 15, v2
    v_lshrrev_b32 v4, 4, v2
    s_and_b32 s32, s2, 7
    s_lshr_b32 s33, s2, 3
    s_mov_b32 s37, 0xffffff00
    s_mov_b32 s40, {SPIN}
    s_cmp_eq_u32 s3, 0
    s_cbranch_scc1 AUX
    """)
    VR, KF, Q, S, PM, P, ACC, LL, ONES, T = 16, 80, 144, 160, 176, 208, 216, 224, 228, 232
    A(f"""
    s_sub_u32 s3, s3, 1
    s_and_b32 s34, s33, 1
    s_lshr_b32 s35, s33, 1
    s_lshl_b32 s4, s34, 3
    s_add_u32 s4, s4, s32
    s_lshl_b32 s4, s4, 23
    s_lshl_b32 s5, s35, 16
    s_add_u32 s4, s4, s5
    s_lshl_b32 s5, s3, 12
    s_add_u32 s4, s4, s5
    s_add_u32 s4, s4, {28672*256}
    v_lshlrev_b32 v6, 8, v4
    v_lshl_add_u32 v7, v3, 4, v6
    v_lshlrev_b32 v8, 2, v4
    v_xor_b32 v8, v8, v3
    v_lshl_add_u32 v8, v8, 4, v6
    v_xor_b32 v9, 16, v8
    v_xor_b32 v10, 32, v8
    v_xor_b32 v11, 48, v8
    s_lshl_b32 s41, s3, 14
    """)
    for i in range(4):
        A(f"s_add_u32 s5, s33, {i}"); A("s_and_b32 s5, s5, 3"); A("s_lshl_b32 s5, s5, 14"); A(f"s_add_u32 s{44+i}, s5, s4")
    A("s_waitcnt lgkmcnt(0)")
    A("s_load_dword s38, s[30:31], 0")
    cnt = 0
    for i in range(4):
        A(f"s_add_u32 s6, s10, s{44+i}"); A("s_addc_u32 s7, s11, 0")
        A(f"s_add_u32 m0, s41, {L_K + i*4096}")
        for t in range(4):
            if cnt >= D: A(f"s_waitcnt vmcnt({D-1})")
            elif t == 0: A("s_nop 0")
            A(f"global_load_lds_dwordx4 v{8+t}, s[6:7] offset:{t*1024} nt"); cnt += 1
    for i in range(4):
        A(f"s_add_u32 s6, s12, s{44+i}"); A("s_addc_u32 s7, s13, 0")
        for t in range(4):
            if cnt >= D: A(f"s_waitcnt vmcnt({D-1})")
            A(f"global_load_dwordx4 {vr(VR + 16*i + 4*t)}, v7, s[6:7] offset:{t*1024} nt"); cnt += 1
    A.stamp(8)
    A(f"""
    v_and_b32 v8, 3, v3
    v_lshrrev_b32 v9, 2, v3
    v_lshl_add_u32 v8, v8, 2, v9
    v_lshlrev_b32 v8, 8, v8
    v_xor_b32 v9, v4, v3
    v_lshl_add_u32 v8, v9, 4, v8
    v_add_u32 v8, s41, v8
    v_xor_b32 v9, 64, v8
    v_xor_b32 v10, 0x80, v8
    v_xor_b32 v11, 0xc0, v8
    s_waitcnt vmcnt(16)
    """)
    for i in range(4):
        for jj in range(4):
            A(f"ds_read_b128 {vr(KF + 16*i + 4*jj)}, v{8+jj} offset:{L_K + i*4096}")
    A(f"""
    v_and_b32 v12, 3, v3
    v_mul_u32_u24 v13, 320, v12
    v_lshl_add_u32 v13, v4, 4, v13
    v_mov_b32 v{ONES}, 0x3f803f80
    v_mov_b32 v{ONES+1}, 0x3f803f80
    v_mov_b32 v{ONES+2}, 0x3f803f80
    v_mov_b32 v{ONES+3}, 0x3f803f80
    s_mov_b32 s42, 0x3db504f3
    s_mov_b32 s43, 0x3fb8aa3b
    s_mov_b32 s48, 0x05040100
    s_mov_b32 s49, 0x07060302
    s_barrier
    """)
    A.stamp(9)
    for jj in range(4): A(f"ds_read_b128 {vr(Q + 4*jj)}, v13 offset:{L_Q + 64*jj}")
    A("s_waitcnt lgkmcnt(0)")
    A("s_add_u32 s36, s38, 1"); A("s_and_b32 s36, s36, 0xff"); A("v_mov_b32 v5, s36")
    for jj in range(4):
        for i in range(4):
            c = "0" if jj == 0 else vr(S + 4*i)
            A(f"v_mfma_f32_16x16x32_bf16 {vr(S + 4*i)}, {vr(KF + 16*i + 4*jj)}, {vr(Q + 4*jj)}, {c}")
    A(f"""
    v_lshlrev_b32 v14, 6, v12
    s_lshl_b32 s5, s3, 4
    v_lshl_add_u32 v15, v4, 2, v14
    v_add_u32 v15, s5, v15
    s_nop 4
    """)
    for p in range(8):
        a, b = S + 2*p, S + 2*p + 1
        A(f"v_cvt_pk_bf16_f32 v{T}, v{a}, v{b}")
        A(f"v_lshlrev_b32 v{a}, 16, v{T}")
        A(f"v_and_b32 v{b}, 0xffff0000, v{T}")
        A(f"v_mul_f32 v{a}, s42, v{a}")
        A(f"v_mul_f32 v{b}, s42, v{b}")
        A(f"v_cvt_pk_bf16_f32 v{T}, v{a}, v{b}")
        A(f"v_lshlrev_b32 v{a}, 16, v{T}")
        A(f"v_and_b32 v{b}, 0xffff0000, v{T}")
        if p == 0: A(f"v_max_f32 v{T+1}, v{a}, v{b}")
        else: A(f"v_max3_f32 v{T+1}, v{T+1}, v{a}, v{b}")
    A(f"ds_write_b32 v15, v{T+1} offset:{L_MX}")
    A("s_waitcnt lgkmcnt(0)")
    A("s_barrier")
    for k in range(4): A(f"ds_read_b128 {vr(T + 4*k)}, v14 offset:{L_MX + 16*k}")
    A("s_waitcnt lgkmcnt(0)")
    A(f"v_max3_f32 v{T}, v{T}, v{T+1}, v{T+2}")
    for k in range(3, 15, 2): A(f"v_max3_f32 v{T}, v{T}, v{T+k}, v{T+k+1}")
    A(f"v_max_f32 v{T}, v{T}, v{T+15}")
    A(f"v_mul_f32 v{T+1}, s43, v{T}")
    for r in range(16): A(f"v_fma_f32 v{S+r}, v{S+r}, s43, -v{T+1}")
    for r in range(16): A(f"v_exp_f32 v{S+r}, v{S+r}")
    A("s_nop 0")
    for p in range(8): A(f"v_cvt_pk_bf16_f32 v{P+p}, v{S+2*p}, v{S+2*p+1}")
    A(f"v_lshrrev_b32 v{T+2}, 2, v3")
    A("s_nop 0")
    A(f"v_mfma_f32_16x16x32_bf16 {vr(LL)}, {vr(P)}, {vr(ONES)}, 0")
    A(f"v_mfma_f32_16x16x32_bf16 {vr(LL)}, {vr(P+4)}, {vr(ONES)}, {vr(LL)}")
    for dp in range(4):
        A(f"v_cmp_eq_u32 vcc, {dp}, v{T+2}")
        A("s_nop 1")
        for k in range(8): A(f"v_cndmask_b32 v{PM + 8*dp + k}, 0, v{P+k}, vcc")
    A(f"v_mov_b32 v{T+3}, s5")
    A(f"ds_write_b128 v{T+3}, {vr(LL)} offset:{L_LS}")
    VP = KF
    def perms(u, pairs):
        for p in pairs:
            X = VR + 32*u + 8*p; Y = X + 4
            for dw in range(4):
                A(f"v_perm_b32 v{VP + 32*u + 4*(2*dw) + p}, v{Y+dw}, v{X+dw}, s48")
                A(f"v_perm_b32 v{VP + 32*u + 4*(2*dw+1) + p}, v{Y+dw}, v{X+dw}, s49")
    def pv(u):
        for d in range(8):
            acc = ACC + 4*(d & 1)
            c = "0" if (u == 0 and d < 2) else vr(acc)
            A(f"v_mfma_f32_16x16x32_bf16 {vr(acc)}, {vr(PM + 8*(d>>1) + 4*u)}, {vr(VP + 32*u + 4*d)}, {c}")
    A("s_waitcnt lgkmcnt(0)")
    A("s_barrier")
    skip = A.lab("NS")
    A(f"""
    s_lshl_b32 s4, s32, 1
    s_add_u32 s4, s4, s34
    s_lshl_b32 s4, s4, 4
    s_add_u32 s4, s4, s35
    s_cmp_lg_u32 s3, 0
    s_cbranch_scc1 {skip}
    v_mov_b32 v{T+3}, 0
    ds_read_b128 {vr(T+4)}, v{T+3} offset:{L_LS}
    ds_read_b128 {vr(T+8)}, v{T+3} offset:{L_LS+16}
    ds_read_b128 {vr(T+12)}, v{T+3} offset:{L_LS+32}
    ds_read_b128 {vr(LL)}, v{T+3} offset:{L_LS+48}
    v_readlane_b32 s50, v{T}, 0
    v_readlane_b32 s51, v{T}, 1
    v_readlane_b32 s52, v{T}, 2
    v_readlane_b32 s53, v{T}, 3
    s_lshl_b32 s5, s4, 5
    s_add_u32 s6, s30, s5
    s_addc_u32 s7, s31, 0
    s_add_u32 s6, s6, {WS_ST}
    s_addc_u32 s7, s7, 0
    v_cmp_eq_u32 vcc, 0, v2
    s_waitcnt lgkmcnt(0)
    """)
    for r in range(4):
        A(f"v_add_f32 v{T+4+r}, v{T+4+r}, v{T+8+r}")
        A(f"v_add_f32 v{T+12+r}, v{T+12+r}, v{LL+r}")
        A(f"v_add_f32 v{T+4+r}, v{T+4+r}, v{T+12+r}")
        A(f"v_mov_b32 v{T+8+r}, s{50+r}")
        A(f"v_cndmask_b32 v{T+4+r}, v{T+4+r}, v{T+8+r}, vcc")
    tag4(A, T+4, T+4)
    A(f"""
    v_lshlrev_b32 v{T+3}, 4, v2
    s_mov_b64 exec, 3
    global_store_dwordx4 v{T+3}, {vr(T+4)}, s[6:7] sc1
    s_mov_b64 exec, -1
    {skip}:
    """)
    A("s_waitcnt vmcnt(8)")
    perms(0, range(4))
    A("s_nop 1")
    pv(0)
    A(f"""
    s_lshl_b32 s5, s3, 11
    v_lshlrev_b32 v14, 7, v3
    v_lshl_add_u32 v14, v4, 5, v14
    v_add_u32 v14, s5, v14
    s_lshl_b32 s5, s3, 9
    v_lshlrev_b32 v15, 4, v2
    v_add_u32 v15, s5, v15
    s_lshl_b32 s5, s4, 11
    s_add_u32 s6, s30, s5
    s_addc_u32 s7, s31, 0
    s_add_u32 s6, s6, {WS_OP}
    s_addc_u32 s7, s7, 0
    """)
    for p in range(4):
        A(f"s_waitcnt vmcnt({6 - 2*p})")
        perms(1, [p])
    A.stamp(10)
    A("s_nop 1")
    pv(1)
    A("s_nop 7")
    A(f"ds_write_b128 v14, {vr(ACC)} offset:{L_OW}")
    A(f"ds_write_b128 v14, {vr(ACC+4)} offset:{L_OW+16}")
    A("s_waitcnt lgkmcnt(0)")
    A("s_barrier")
    A("s_mov_b32 exec_hi, 0")
    for k in range(4): A(f"ds_read_b128 {vr(T + 4*k)}, v15 offset:{L_OW + 2048*k}")
    A("s_waitcnt lgkmcnt(2)")
    for r in range(4): A(f"v_add_f32 v{T+r}, v{T+r}, v{T+4+r}")
    A("s_waitcnt lgkmcnt(0)")
    for r in range(4): A(f"v_add_f32 v{T+8+r}, v{T+8+r}, v{T+12+r}")
    for r in range(4): A(f"v_add_f32 v{T+r}, v{T+r}, v{T+8+r}")
    tag4(A, T, T)
    A(f"global_store_dwordx4 v15, {vr(T)}, s[6:7] sc1")
    A.stamp(11)
    if stamps:
        A("s_cmp_lg_u32 s3, 0"); A("s_cbranch_scc1 END")
        stamp_store(A, 8, 4)
    A("s_endpgm")

    W0, W1, OPS, X, MK, DQ, DG, DW, T = 16, 80, 144, 208, 224, 228, 232, 236, 240
    A("AUX:")
    A(f"""
    s_lshr_b32 s34, s2, 5
    s_and_b32 s35, s33, 3
    s_lshl_b32 s4, s32, 2
    s_add_u32 s35, s35, s4
    s_lshl_b32 s4, s34, 19
    s_lshl_b32 s5, s35, 8
    s_add_u32 s4, s4, s5
    v_lshlrev_b32 v6, 5, v2
    v_lshlrev_b32 v7, 17, v4
    v_lshl_add_u32 v7, v3, 4, v7
    s_movk_i32 s41, 0x2000
    s_movk_i32 s42, 3584
    v_mul_u32_u24 v8, {16*3584}, v4
    v_lshl_add_u32 v8, v3, 4, v8
    s_and_b32 s43, s2, 31
    s_min_u32 s43, s43, 27
    s_lshr_b32 s44, s43, 1
    s_and_b32 s43, s43, 1
    s_mul_i32 s5, s34, {64*3584}
    s_lshl_b32 s45, s44, 8
    s_add_u32 s5, s5, s45
    s_waitcnt lgkmcnt(0)
    global_load_dwordx4 {vr(X)}, v6, s[8:9]
    global_load_dwordx4 {vr(X+4)}, v6, s[8:9] offset:16
    s_add_u32 s6, s14, s4
    s_addc_u32 s7, s15, 0
    """)
    for t in range(16):
        A(f"global_load_dwordx4 {vr(W0 + 4*t)}, v7, s[6:7] nt")
        if t < 15: A("v_add_u32 v7, s41, v7")
    A("s_load_dword s38, s[30:31], 0")
    A(f"""
    s_cmp_eq_u32 s43, 1
    s_cselect_b32 s6, s22, s20
    s_cselect_b32 s7, s23, s21
    s_add_u32 s6, s6, s5
    s_addc_u32 s7, s7, 0
    """)
    for t in range(16):
        A(f"global_load_dwordx4 {vr(W1 + 4*t)}, v8, s[6:7] nt")
        if t < 15: A("v_add_u32 v8, s42, v8")
    npf = 0
    if prefetch:
        A("s_getpc_b64 s[46:47]")
        A("PCREF:")
        A(f"s_sub_u32 s46, s46, PCREF-{KN}"); A("s_subb_u32 s47, s47, 0")
        A("v_lshlrev_b32 v9, 6, v2")
        A("v_min_u32 v9, CODE_LAST0, v9")
        A(f"global_load_dword v{T+12}, v9, s[46:47]")
        A("v_add_u32 v9, 0x1000, v9"); A("v_min_u32 v9, CODE_LAST0, v9")
        A(f"global_load_dword v{T+13}, v9, s[46:47]")
        A("v_add_u32 v9, 0x1000, v9"); A("v_min_u32 v9, CODE_LAST0, v9")
        A(f"global_load_dword v{T+14}, v9, s[46:47]")
        npf = 3
    A(f"""
    v_and_b32 v9, 1, v3
    v_lshlrev_b32 v9, 4, v9
    v_mov_b32 v10, 0xffff
    v_lshlrev_b32 v9, v9, v10
    v_bfe_u32 v10, v3, 1, 2
    """)
    for j in range(4):
        A(f"v_cmp_eq_u32 vcc, {j}, v10"); A("s_nop 1"); A(f"v_cndmask_b32 v{MK+j}, 0, v9, vcc")
    F = OPS
    A(f"s_waitcnt vmcnt({32 + npf})")
    for k in range(8):
        A(f"v_lshlrev_b32 v{F+2*k}, 16, v{X+k}")
        A(f"v_and_b32 v{F+2*k+1}, 0xffff0000, v{X+k}")
    def halfsum(dst, tmp):
        for rr in (8, 4, 2, 1):
            A("s_nop 1"); A(f"v_add_f32_dpp v{dst}, v{dst}, v{dst} row_ror:{rr} row_mask:0xf bank_mask:0xf")
        A(f"v_mov_b32 v{tmp}, v{dst}"); A("s_nop 1")
        A(f"v_permlane16_swap_b32 v{dst}, v{tmp}")
        A(f"v_add_f32 v{dst}, v{dst}, v{tmp}")
    A(f"v_add_f32 v{T}, v{F}, v{F+1}")
    for k in range(2, 16): A(f"v_add_f32 v{T}, v{T}, v{F+k}")
    halfsum(T, T+1)
    A(f"v_mul_f32 v{T}, 0x3b000000, v{T}")
    A(f"v_mov_b32 v{T+2}, 0")
    for k in range(16):
        A(f"v_sub_f32 v{T+3}, v{F+k}, v{T}")
        A(f"v_fmac_f32 v{T+2}, v{T+3}, v{T+3}")
    halfsum(T+2, T+1)
    A(f"""
    v_mul_f32 v{T+2}, 0x3b000000, v{T+2}
    v_cvt_pk_bf16_f32 v{T+3}, v{T}, v{T+2}
    v_lshlrev_b32 v{T}, 16, v{T+3}
    v_and_b32 v{T+2}, 0xffff0000, v{T+3}
    v_add_f32 v{T+2}, 0x3727c5ac, v{T+2}
    v_cvt_pk_bf16_f32 v{T+2}, v{T+2}, v{T+2}
    v_and_b32 v{T+2}, 0xffff0000, v{T+2}
    v_sqrt_f32 v{T+2}, v{T+2}
    s_nop 0
    v_cvt_pk_bf16_f32 v{T+2}, v{T+2}, v{T+2}
    v_and_b32 v{T+2}, 0xffff0000, v{T+2}
    v_rcp_f32 v{T+2}, v{T+2}
    """)
    for k in range(16):
        A(f"v_sub_f32 v{F+k}, v{F+k}, v{T}")
    for k in range(8):
        A(f"v_cvt_pk_bf16_f32 v{T+3}, v{F+2*k}, v{F+2*k+1}")
        A(f"v_lshlrev_b32 v{F+2*k}, 16, v{T+3}")
        A(f"v_and_b32 v{F+2*k+1}, 0xffff0000, v{T+3}")
    for k in range(16):
        A(f"v_mul_f32 v{F+k}, v{F+k}, v{T+2}")
    for k in range(16):
        A(f"v_cvt_pk_bf16_f32 v{F+k}, v{F+k}, v{F+k}")
    A("v_lshlrev_b32 v9, 6, v2")
    for k in range(4): A(f"ds_write_b128 v9, {vr(F+4*k)} offset:{L_XN + 16*k}")
    A(f"""
    v_lshrrev_b32 v10, 3, v3
    v_lshlrev_b32 v11, 11, v10
    v_lshl_add_u32 v11, v4, 6, v11
    s_lshl_b32 s5, s34, 8
    v_add_u32 v11, s5, v11
    s_waitcnt lgkmcnt(0)
    """)
    for k in range(4): A(f"ds_read_b128 {vr(X+4*k)}, v11 offset:{L_XN + 16*k}")
    A("s_add_u32 s36, s38, 1"); A("s_and_b32 s36, s36, 0xff"); A("v_mov_b32 v5, s36")
    A(f"""
    v_and_b32 v12, 1, v4
    v_lshlrev_b32 v12, 4, v12
    v_lshl_add_u32 v12, v3, 5, v12
    v_lshrrev_b32 v13, 1, v4
    s_waitcnt lgkmcnt(0)
    """)
    for t in range(16):
        for j in range(4): A(f"v_and_b32 v{OPS+4*t+j}, v{X+t}, v{MK+j}")
    A.stamp(1)
    for t in range(16):
        A(f"s_waitcnt vmcnt({16 + npf + 15 - t})")
        A(f"v_mfma_f32_16x16x32_bf16 {vr(DQ)}, {vr(OPS+4*t)}, {vr(W0+4*t)}, {'0' if t == 0 else vr(DQ)}")
    A(f"""
    s_lshl_b32 s4, s35, 3
    s_add_u32 s4, s4, s34
    s_lshl_b32 s4, s4, 9
    s_add_u32 s6, s30, s4
    s_addc_u32 s7, s31, 0
    s_add_u32 s6, s6, {WS_QP}
    s_addc_u32 s7, s7, 0
    v_lshl_add_u32 v14, v13, 17, v12
    s_nop 1
    """)
    tag4(A, DQ, DQ)
    A(f"global_store_dwordx4 v14, {vr(DQ)}, s[6:7] sc1")
    A.stamp(2)
    for t in range(16):
        A(f"s_waitcnt vmcnt({1 + npf + 15 - t})")
        A(f"v_mfma_f32_16x16x32_bf16 {vr(DG)}, {vr(OPS+4*t)}, {vr(W1+4*t)}, {'0' if t == 0 else vr(DG)}")
    nog = A.lab("NOG")
    A(f"""
    s_lshl_b32 s4, s43, 3
    s_add_u32 s4, s4, s34
    s_mul_i32 s4, s4, {2*7168}
    s_lshl_b32 s5, s44, 9
    s_add_u32 s4, s4, s5
    s_add_u32 s6, s30, s4
    s_addc_u32 s7, s31, 0
    s_add_u32 s6, s6, {WS_GP}
    s_addc_u32 s7, s7, 0
    v_mul_u32_u24 v14, 7168, v13
    v_add_u32 v14, v14, v12
    s_and_b32 s5, s2, 31
    s_cmp_ge_u32 s5, 28
    s_cbranch_scc1 {nog}
    """)
    tag4(A, DG, DG)
    A(f"global_store_dwordx4 v14, {vr(DG)}, s[6:7] sc1")
    A(f"{nog}:")
    WD = W1
    A(f"""
    s_and_b32 s45, s33, 3
    s_lshl_b32 s46, s32, 3
    s_add_u32 s46, s46, s34
    s_mul_i32 s4, s46, {28*1024}
    s_lshl_b32 s5, s45, 8
    s_add_u32 s4, s4, s5
    s_add_u32 s6, s24, s4
    s_addc_u32 s7, s25, 0
    v_lshlrev_b32 v7, 10, v4
    v_lshl_add_u32 v7, v3, 4, v7
    s_movk_i32 s41, 0x1000
    """)
    for t in range(7):
        A(f"global_load_dwordx4 {vr(WD + 4*t)}, v7, s[6:7] nt")
        if t < 6: A("v_add_u32 v7, s41, v7")
    probe = A.lab("QPROBE")
    A(f"""
    s_and_b32 s4, s33, 1
    s_lshl_b32 s4, s4, 5
    s_lshl_b32 s5, s32, 2
    s_add_u32 s4, s4, s5
    s_lshl_b32 s4, s4, 12
    s_add_u32 s6, s30, s4
    s_addc_u32 s7, s31, 0
    s_add_u32 s6, s6, {WS_QP}
    s_addc_u32 s7, s7, 0
    v_lshlrev_b32 v8, 8, v2
    v_lshlrev_b32 v9, 4, v2
    {probe}:
    global_load_dwordx4 {vr(T)}, v8, s[6:7] sc1
    s_waitcnt vmcnt(0)
    """)
    tagcheck(A, range(T, T+4), T+4, probe)
    A("v_mov_b32 v10, v9")
    for t in range(16):
        A(f"global_load_dwordx4 {vr(W0 + 4*t)}, v10, s[6:7] offset:{(t&3)*1024} sc1")
        if t % 4 == 3 and t < 15: A("v_add_u32 v10, s41, v10")
    A("s_waitcnt vmcnt(0)")
    tagcheck(A, range(W0, W0+64), T+4, probe)
    for hh in range(4):
        b0 = W0 + 16*hh
        for r in range(4):
            A(f"v_add_f32 v{b0+r}, v{b0+r}, v{b0+4+r}")
            A(f"v_add_f32 v{b0+8+r}, v{b0+8+r}, v{b0+12+r}")
            A(f"v_add_f32 v{b0+r}, v{b0+r}, v{b0+8+r}")
    A("s_nop 1")
    for pr in range(2):
        a0, b0 = W0 + 32*pr, W0 + 32*pr + 16
        for r in range(4): A(f"v_permlane32_swap_b32 v{a0+r}, v{b0+r}")
        for r in range(4): A(f"v_add_f32 v{a0+r}, v{a0+r}, v{b0+r}")
        A(f"v_cvt_pk_bf16_f32 v{a0}, v{a0}, v{a0+1}")
        A(f"v_cvt_pk_bf16_f32 v{a0+1}, v{a0+2}, v{a0+3}")
    A(f"""
    v_lshrrev_b32 v10, 5, v2
    v_mul_u32_u24 v10, 320, v10
    v_and_b32 v11, 31, v2
    v_lshl_add_u32 v10, v11, 3, v10
    ds_write_b64 v10, {vr(W0,2)} offset:{L_Q}
    ds_write_b64 v10, {vr(W0+32,2)} offset:{L_Q+640}
    """)
    A.stamp(3)
    HG = W1 + 28
    hl = A.lab("HG")
    A(f"""
    s_mul_i32 s4, s46, 112
    s_add_u32 s6, s30, s4
    s_addc_u32 s7, s31, 0
    s_add_u32 s6, s6, {WS_GP}
    s_addc_u32 s7, s7, 0
    v_and_b32 v10, 7, v2
    v_min_u32 v11, 6, v10
    v_lshrrev_b32 v14, 3, v2
    v_mul_u32_u24 v14, {2*7168}, v14
    v_lshl_add_u32 v14, v11, 4, v14
    v_add_u32 v15, 7168, v14
    v_add_u32 v8, {16*7168}, v14
    v_add_u32 v9, {17*7168}, v14
    {hl}:
    global_load_dwordx4 {vr(HG)}, v14, s[6:7] sc1
    global_load_dwordx4 {vr(HG+4)}, v15, s[6:7] sc1
    global_load_dwordx4 {vr(HG+8)}, v8, s[6:7] sc1
    global_load_dwordx4 {vr(HG+12)}, v9, s[6:7] sc1
    s_waitcnt vmcnt(0)
    """)
    tagcheck(A, range(HG, HG+16), T+4, hl)
    A("s_nop 1")
    for m in range(2):
        a0, b0 = HG + 8*m, HG + 8*m + 4
        for r in range(4): A(f"v_permlane32_swap_b32 v{a0+r}, v{b0+r}")
        for r in range(4): A(f"v_add_f32 v{a0+r}, v{a0+r}, v{b0+r}")
    A("s_nop 1")
    for m in range(2):
        a0 = HG + 8*m
        for r in range(2): A(f"v_permlane16_swap_b32 v{a0+r}, v{a0+2+r}")
        for r in range(2): A(f"v_add_f32 v{a0+r}, v{a0+r}, v{a0+2+r}")
    A("s_nop 1")
    for m in range(2):
        for r in range(2):
            a = HG + 8*m + r
            A(f"v_add_f32_dpp v{a}, v{a}, v{a} row_ror:8 row_mask:0xf bank_mask:0xf")
    g0, u0 = HG, HG + 8
    A(f"""
    v_cvt_pk_bf16_f32 v{T}, v{g0}, v{g0+1}
    v_cvt_pk_bf16_f32 v{T+1}, v{u0}, v{u0+1}
    v_lshlrev_b32 v{g0}, 16, v{T}
    v_and_b32 v{g0+1}, 0xffff0000, v{T}
    v_lshlrev_b32 v{u0}, 16, v{T+1}
    v_and_b32 v{u0+1}, 0xffff0000, v{T+1}
    v_max_f32 v{g0}, 0, v{g0}
    v_max_f32 v{g0+1}, 0, v{g0+1}
    v_mul_f32 v{g0}, v{g0}, v{u0}
    v_mul_f32 v{g0+1}, v{g0+1}, v{u0+1}
    v_cvt_pk_bf16_f32 v{g0}, v{g0}, v{g0}
    v_cvt_pk_bf16_f32 v{g0+1}, v{g0+1}, v{g0+1}
    v_lshlrev_b32 v11, 6, v4
    v_lshl_add_u32 v11, v10, 2, v11
    v_add_u32 v11, {L_H}, v11
    ds_write2_b32 v11, v{g0}, v{g0+1} offset0:0 offset1:8
    v_lshrrev_b32 v10, 3, v3
    v_lshlrev_b32 v10, 7, v10
    v_lshl_add_u32 v10, v4, 5, v10
    s_waitcnt lgkmcnt(0)
    ds_read_b128 {vr(X)}, v10 offset:{L_H}
    ds_read_b128 {vr(X+4)}, v10 offset:{L_H+16}
    s_waitcnt lgkmcnt(0)
    """)
    for t in range(7):
        for j in range(4): A(f"v_and_b32 v{OPS+4*t+j}, v{X+t}, v{MK+j}")
    A("s_nop 1")
    for t in range(7):
        A(f"v_mfma_f32_16x16x32_bf16 {vr(DW)}, {vr(OPS+4*t)}, {vr(WD+4*t)}, {'0' if t == 0 else vr(DW)}")
    A.stamp(4)
    A(f"""
    s_lshl_b32 s4, s32, 19
    s_lshl_b32 s5, s34, 14
    s_add_u32 s4, s4, s5
    s_lshl_b32 s5, s45, 8
    s_add_u32 s4, s4, s5
    s_add_u32 s6, s16, s4
    s_addc_u32 s7, s17, 0
    v_lshlrev_b32 v7, 12, v4
    v_lshl_add_u32 v7, v3, 4, v7
    v_add_u32 v8, 0x20000, v7
    v_add_u32 v9, 0x40000, v7
    v_add_u32 v10, 0x60000, v7
    s_barrier
    """)
    for s in range(2):
        for sg in range(8):
            A(f"global_load_dwordx4 {vr(W0 + 32*s + 4*sg)}, v{7 + (sg&3)}, s[6:7] offset:{(2*s + (sg>>2))*1024} nt")
    SG = W1
    OG = W1 + 16
    AO = W1 + 48
    A(f"""
    v_lshrrev_b32 v11, 3, v3
    v_and_b32 v14, 7, v3
    v_lshl_add_u32 v11, v11, 4, v14
    v_lshlrev_b32 v14, 5, v11
    v_lshlrev_b32 v15, 11, v11
    v_lshl_add_u32 v15, v4, 6, v15
    v_add_u32 v11, 0x4000, v15
    s_lshl_b32 s4, s32, 10
    s_add_u32 s6, s30, s4
    s_addc_u32 s7, s31, 0
    s_add_u32 s6, s6, {WS_ST}
    s_addc_u32 s7, s7, 0
    s_lshl_b32 s4, s32, 16
    s_lshl_b32 s5, s34, 8
    s_add_u32 s4, s4, s5
    s_add_u32 s48, s30, s4
    s_addc_u32 s49, s31, 0
    s_add_u32 s48, s48, {WS_OP}
    s_addc_u32 s49, s49, 0
    s_mov_b32 s43, 0x3fb8aa3b
    s_mov_b32 s50, 0x05040100
    s_mov_b32 s51, 0x07060302
    s_barrier
    s_barrier
    s_barrier
    """)
    sl = A.lab("SG")
    A(f"""
    {sl}:
    global_load_dwordx4 {vr(SG)}, v14, s[6:7] sc1
    global_load_dwordx4 {vr(SG+4)}, v14, s[6:7] offset:16 sc1
    global_load_dwordx4 {vr(SG+8)}, v14, s[6:7] offset:256 sc1
    global_load_dwordx4 {vr(SG+12)}, v14, s[6:7] offset:272 sc1
    s_waitcnt vmcnt(0)
    """)
    tagcheck(A, range(SG, SG+16), T+4, sl)
    A.stamp(5)
    ol = A.lab("OG")
    def ogather():
        for pr in range(2):
            for k in range(4):
                A(f"global_load_dwordx4 {vr(OG + 16*pr + 4*k)}, v{15 if pr == 0 else 11}, s[48:49] offset:{16*k} sc1")
    ogather()
    def red8(op, r):
        for mod in ("row_half_mirror", "quad_perm:[1,0,3,2]", "quad_perm:[2,3,0,1]"):
            A("s_nop 0")
            for h in range(4): A(f"{op}_dpp v{r+h}, v{r+h}, v{r+h} {mod} row_mask:0xf bank_mask:0xf")
    for h in range(4): A(f"v_max_f32 v{T+h}, v{SG+h}, v{SG+8+h}")
    red8("v_max_f32", T)
    for h in range(4):
        A(f"v_sub_f32 v{SG+h}, v{SG+h}, v{T+h}"); A(f"v_sub_f32 v{SG+8+h}, v{SG+8+h}, v{T+h}")
    for h in range(4):
        A(f"v_mul_f32 v{SG+h}, s43, v{SG+h}"); A(f"v_mul_f32 v{SG+8+h}, s43, v{SG+8+h}")
    for h in range(4):
        A(f"v_exp_f32 v{SG+h}, v{SG+h}"); A(f"v_exp_f32 v{SG+8+h}, v{SG+8+h}")
    A("s_nop 0")
    for h in range(4): A(f"v_mul_f32 v{T+h}, v{SG+h}, v{SG+4+h}")
    for h in range(4): A(f"v_fmac_f32 v{T+h}, v{SG+8+h}, v{SG+12+h}")
    red8("v_add_f32", T)
    for h in range(4): A(f"v_rcp_f32 v{T+h}, v{T+h}")
    A("s_nop 0")
    for h in range(4):
        A(f"v_mul_f32 v{SG+h}, v{SG+h}, v{T+h}"); A(f"v_mul_f32 v{SG+8+h}, v{SG+8+h}, v{T+h}")
    for s in range(2):
        for p in range(4):
            Xr = W0 + 32*s + 8*p; Yr = Xr + 4
            for dw in range(4):
                A(f"v_perm_b32 v{OPS + 32*s + 4*(2*dw) + p}, v{Yr+dw}, v{Xr+dw}, s50")
                A(f"v_perm_b32 v{OPS + 32*s + 4*(2*dw+1) + p}, v{Yr+dw}, v{Xr+dw}, s51")
    A(f"""
    s_lshl_b32 s4, s45, 6
    s_add_u32 s4, s4, s46
    s_lshl_b32 s4, s4, 10
    s_add_u32 s6, s30, s4
    s_addc_u32 s7, s31, 0
    s_add_u32 s6, s6, {WS_FP}
    s_addc_u32 s7, s7, 0
    v_lshl_add_u32 v14, v13, 9, v12
    """)
    first = A.lab("OG1")
    A(f"s_branch {first}")
    A(f"{ol}:")
    ogather()
    A(f"{first}:")
    A("s_waitcnt vmcnt(0)")
    tagcheck(A, range(OG, OG+32), T+4, ol)
    A.stamp(6)
    for k in range(4):
        for h in range(4):
            A(f"v_mul_f32 v{OG+4*k+h}, v{OG+4*k+h}, v{SG+h}")
        for h in range(4):
            A(f"v_fmac_f32 v{OG+4*k+h}, v{OG+16+4*k+h}, v{SG+8+h}")
        A(f"v_cvt_pk_bf16_f32 v{AO+2*k}, v{OG+4*k}, v{OG+4*k+1}")
        A(f"v_cvt_pk_bf16_f32 v{AO+2*k+1}, v{OG+4*k+2}, v{OG+4*k+3}")
    A("s_nop 1")
    DO = W0
    for s in range(2):
        for d in range(8):
            A(f"v_mfma_f32_16x16x32_bf16 {vr(DO+4*d)}, {vr(AO+4*s)}, {vr(OPS+32*s+4*d)}, {'0' if s == 0 else vr(DO+4*d)}")
    A("s_nop 0")
    for d in range(8):
        if d >= 4: pass
        A(f"v_add_f32 v{DO+4*d}, v{DO+4*d}, v{DO+4*d+1}")
        A(f"v_add_f32 v{DO+4*d+2}, v{DO+4*d+2}, v{DO+4*d+3}")
        A(f"v_add_f32 v{DO+4*d}, v{DO+4*d}, v{DO+4*d+2}")
    A("s_nop 1")
    for d in range(4): A(f"v_permlane16_swap_b32 v{DO+4*d}, v{DO+16+4*d}")
    for d in range(4): A(f"v_add_f32 v{DO+4*d}, v{DO+4*d}, v{DO+16+4*d}")
    for d in range(4): A(f"v_add_f32 v{DW+d}, v{DW+d}, v{DO+4*d}")
    tag4(A, DW, DW)
    A(f"global_store_dwordx4 v14, {vr(DW)}, s[6:7] sc1")
    fin = "AUXEND" if stamps else "END"
    fl = A.lab("FG")
    FG = W1
    A(f"""
    s_cmp_ge_u32 s2, 32
    s_cbranch_scc1 {fin}
    s_lshr_b32 s4, s2, 3
    s_lshl_b32 s4, s4, 16
    s_and_b32 s5, s2, 7
    s_lshl_b32 s5, s5, 7
    s_add_u32 s4, s4, s5
    s_add_u32 s6, s30, s4
    s_addc_u32 s7, s31, 0
    s_add_u32 s6, s6, {WS_FP}
    s_addc_u32 s7, s7, 0
    v_and_b32 v7, 7, v2
    v_lshrrev_b32 v8, 3, v2
    v_lshlrev_b32 v8, 10, v8
    v_lshl_add_u32 v8, v7, 4, v8
    s_movk_i32 s41, 0x2000
    s_bfe_u32 s4, s2, 0x10002
    s_lshl_b32 s4, s4, 10
    s_lshr_b32 s5, s2, 3
    s_lshl_b32 s5, s5, 8
    s_add_u32 s4, s4, s5
    s_and_b32 s5, s2, 3
    s_lshl_b32 s5, s5, 6
    s_add_u32 s4, s4, s5
    v_lshl_add_u32 v10, v7, 2, v4
    v_lshlrev_b32 v10, 1, v10
    v_add_u32 v10, s4, v10
    global_load_ushort v11, v10, s[8:9]
    {fl}:
    v_mov_b32 v9, v8
    """)
    for t in range(8):
        A(f"global_load_dwordx4 {vr(FG+4*t)}, v9, s[6:7] sc1")
        if t < 7: A("v_add_u32 v9, s41, v9")
    A("s_waitcnt vmcnt(0)")
    tagcheck(A, range(FG, FG+32), T+4, fl)
    for st in (16, 8, 4):
        for r in range(st): A(f"v_add_f32 v{FG+r}, v{FG+r}, v{FG+st+r}")
    A(f"""
    s_nop 1
    v_permlane32_swap_b32 v{FG}, v{FG+2}
    v_permlane32_swap_b32 v{FG+1}, v{FG+3}
    v_add_f32 v{FG}, v{FG}, v{FG+2}
    v_add_f32 v{FG+1}, v{FG+1}, v{FG+3}
    s_nop 1
    v_permlane16_swap_b32 v{FG}, v{FG+1}
    v_add_f32 v{FG}, v{FG}, v{FG+1}
    v_lshlrev_b32 v11, 16, v11
    s_nop 0
    v_add_f32_dpp v{FG}, v{FG}, v{FG} row_ror:8 row_mask:0xf bank_mask:0xf
    v_add_f32 v{FG}, v{FG}, v11
    v_cvt_pk_bf16_f32 v{FG}, v{FG}, v{FG}
    s_mov_b32 exec_lo, 0x00ff00ff
    s_mov_b32 exec_hi, 0x00ff00ff
    global_store_short v10, v{FG}, s[26:27]
    s_cmp_lg_u32 s2, 0
    s_cbranch_scc1 {fin}
    s_add_u32 s38, s38, 1
    v_mov_b32 v7, 0
    v_mov_b32 v8, s38
    s_mov_b64 exec, 1
    global_store_dword v7, v8, s[30:31]
    """)
    if stamps:
        A("AUXEND:")
        A.stamp(7)
        stamp_store(A, 0, 8)
    A("END:")
    A("s_endpgm")
    A("CODE_END:")
    body = "\n".join(A.L)
    return f"""{HEADER}; @launch grid=(256,1,1) block=(320,1,1) lds={LDS_TOTAL}
.amdgcn_target "amdgcn-amd-amdhsa--gfx950"
.text
.globl {KN}
.p2align 8
.type {KN},@function
{KN}:
{body}
.set CODE_LAST0, CODE_END-{KN}-4
.section .rodata,"a"
.p2align 6
.amdhsa_kernel {KN}
  .amdhsa_next_free_vgpr 256
  .amdhsa_next_free_sgpr 96
  .amdhsa_accum_offset 256
  .amdhsa_group_segment_fixed_size 0
  .amdhsa_kernarg_size 96
  .amdhsa_user_sgpr_count 2
  .amdhsa_user_sgpr_kernarg_segment_ptr 1
  .amdhsa_system_sgpr_workgroup_id_x 1
.end_amdhsa_kernel
"""

if __name__ == "__main__":
    import build
    open("k1.s", "w").write(gen())
    open("k1s.s", "w").write(gen(stamps=True))
    build.build("k1.s"); build.build("k1s.s")
```
